```python
import torch

def _softmax(x, axis=-1):
    return torch.softmax(x, dim=axis)
def _gelu(x):
    return torch.nn.functional.gelu(x, approximate="tanh")
def _silu(x):
    return torch.nn.functional.silu(x)
def _sigmoid(x):
    return torch.sigmoid(x)
def _layernorm(x, axis=-1, eps=1e-5):
    m = x.mean(dim=axis, keepdim=True)
    v = x.var(dim=axis, keepdim=True, unbiased=False)
    return (x - m) / torch.sqrt(v + eps)
def _scatter_add(tgt, idx, src, axis=0):
    return tgt.clone().index_add_(axis, idx, src)
def _segment_sum(src, seg, n):
    out = torch.zeros((n,) + src.shape[1:], dtype=src.dtype)
    return out.index_add_(0, seg, src)
def _pad(x, pw):
    flat = tuple(v for pair in reversed(pw) for v in pair)
    return torch.nn.functional.pad(x, flat)

kernel_name = 'concat_heads__gqa_block_cached__gqa_block_cached__near_ridge'

def setup_inputs():

    _w = (lambda a: (lambda t: t.to(torch.bfloat16) if t.is_floating_point() else t)(torch.as_tensor(a)))
    def _A_setup():
        B, Sq, D = 8, 96, 448
        Hq, Hkv, Sk, Dh = 16, 8, 1024, 256
        assert Hq % Hkv == 0, (Hq, Hkv)
        return {
            "x": _w((lambda *s: torch.randn(*s, dtype=torch.bfloat16) * 0.8)(B, Sq, D)),
            "k_cache": _w((lambda *s: torch.randn(*s, dtype=torch.bfloat16) * 0.8)(B, Hkv, Sk, Dh)),
            "v_cache": _w((lambda *s: torch.randn(*s, dtype=torch.bfloat16) * 0.05)(B, Hkv, Sk, Dh)),
            "wq": _w((lambda *s: torch.randn(*s, dtype=torch.bfloat16) * 0.8)(D, Hq * Dh) * (D ** -0.5)),
            "wo": _w((lambda *s: torch.randn(*s, dtype=torch.bfloat16) * 0.05)(Hq * Dh, D) * ((Hq * Dh) ** -0.5)),
        }
    _A_in = _A_setup()

    def _B_setup():
        B, Sq, D = 8, 96, 448
        Hq, Hkv, Sk, Dh = 16, 8, 1024, 256
        assert Hq % Hkv == 0, (Hq, Hkv)
        return {
            "x": _w((lambda *s: torch.randn(*s, dtype=torch.bfloat16) * 0.8)(B, Sq, D)),
            "k_cache": _w((lambda *s: torch.randn(*s, dtype=torch.bfloat16) * 0.8)(B, Hkv, Sk, Dh)),
            "v_cache": _w((lambda *s: torch.randn(*s, dtype=torch.bfloat16) * 0.05)(B, Hkv, Sk, Dh)),
            "wq": _w((lambda *s: torch.randn(*s, dtype=torch.bfloat16) * 0.8)(D, Hq * Dh) * (D ** -0.5)),
            "wo": _w((lambda *s: torch.randn(*s, dtype=torch.bfloat16) * 0.05)(Hq * Dh, D) * ((Hq * Dh) ** -0.5)),
        }
    _B_in = _B_setup()

    return {
        "A_x": _A_in["x"],
        "A_k_cache": _A_in["k_cache"],
        "A_v_cache": _A_in["v_cache"],
        "A_wq": _A_in["wq"],
        "A_wo": _A_in["wo"],
        "B_x": _B_in["x"],
        "B_k_cache": _B_in["k_cache"],
        "B_v_cache": _B_in["v_cache"],
        "B_wq": _B_in["wq"],
        "B_wo": _B_in["wo"],
    }

def reference(A_x, A_k_cache, A_v_cache, A_wq, A_wo, B_x, B_k_cache, B_v_cache, B_wq, B_wo):
    def _A_ref(x, k_cache, v_cache, wq, wo):
        B, Sq, D = x.shape
        Hq, Dh = 16, 256
        Hkv = k_cache.shape[1]
        rep = Hq // Hkv
        q = (lambda x, *d: x.permute(*d))((x @ wq).reshape(B, Sq, Hq, Dh), 0, 2, 1, 3)
        k = (lambda x, n, axis: torch.repeat_interleave(x, n, dim=axis))(k_cache, rep, axis=1)
        v = (lambda x, n, axis: torch.repeat_interleave(x, n, dim=axis))(v_cache, rep, axis=1)
        scores = torch.einsum("bhqd,bhkd->bhqk", q, k) * (Dh ** -0.5)
        p = _softmax(scores, axis=-1)
        o = torch.einsum("bhqk,bhkd->bhqd", p, v)
        return (lambda x, *d: x.permute(*d))(o, 0, 2, 1, 3).reshape(B, Sq, Hq * Dh) @ wo

    def _B_ref(x, k_cache, v_cache, wq, wo):
        B, Sq, D = x.shape
        Hq, Dh = 16, 256
        Hkv = k_cache.shape[1]
        rep = Hq // Hkv
        q = (lambda x, *d: x.permute(*d))((x @ wq).reshape(B, Sq, Hq, Dh), 0, 2, 1, 3)
        k = (lambda x, n, axis: torch.repeat_interleave(x, n, dim=axis))(k_cache, rep, axis=1)
        v = (lambda x, n, axis: torch.repeat_interleave(x, n, dim=axis))(v_cache, rep, axis=1)
        scores = torch.einsum("bhqd,bhkd->bhqk", q, k) * (Dh ** -0.5)
        p = _softmax(scores, axis=-1)
        o = torch.einsum("bhqk,bhkd->bhqd", p, v)
        return (lambda x, *d: x.permute(*d))(o, 0, 2, 1, 3).reshape(B, Sq, Hq * Dh) @ wo

    a = _A_ref(A_x, A_k_cache, A_v_cache, A_wq, A_wo)
    b = _B_ref(B_x, B_k_cache, B_v_cache, B_wq, B_wo)
    return torch.concatenate([a, b], axis=-1)
```

```python
import math
import sys

NAME = "concat_heads__gqa_block_cached__gqa_block_cached__near_ridge"


class Asm:
    def __init__(self):
        self.lines = []

    def __call__(self, s):
        self.lines.append("    " + s)

    def label(self, s):
        self.lines.append(s + ":")

    def comment(self, s):
        self.lines.append("    ; " + s)

    def text(self):
        return "\n".join(self.lines) + "\n"


def vr(a, n=1):
    return f"v{a}" if n == 1 else f"v[{a}:{a+n-1}]"


def ar(a, n=1):
    return f"a{a}" if n == 1 else f"a[{a}:{a+n-1}]"


def sr(a, n=1):
    return f"s{a}" if n == 1 else f"s[{a}:{a+n-1}]"


C1 = math.log2(math.e) / 16.0


def f32hex(x):
    import struct
    return "0x%08x" % struct.unpack("<I", struct.pack("<f", x))[0]


NS = 4
KREG = 0
VREG = 65536
NWQ = 14
NKV = 32
LDS1 = 131072

V_L = 1
V_T0, V_T1, V_T2, V_T3 = 2, 3, 4, 5
V_M = 6
V_LS = 7
V_MC = 8
V_AL = 9
V_X = 10
V_OST = 11
V_KD = 12
V_VD = 16
V_WD = 18
V_KA = 20
V_VA = 28
V_KF = 32
V_VF = 48
V_P = 64
V_S = 80
V_PF = 96
V_O = 128

A_Q = 0
A_X = 64

S_WAVE = 3
S_BLK, S_B, S_HKV, S_HQ = 4, 5, 6, 7
SRD_W, SRD_K, SRD_V, SRD_X, SRD_O = 8, 12, 16, 20, 24
S_PTR = 32
S_WS = 40
S_C1 = 42
S_KOFF = 43
S_CNT = 44
S_M0 = 45
S_T = 46
S_WQO = 50


def n_dma(T):
    if T >= NWQ + NKV:
        return 8
    return 4 if T < NWQ else 8


def emit_dma(a, T, slot):
    if T < NWQ:
        a(f"s_add_u32 {sr(S_M0)}, {sr(S_T)}, {VREG + slot*16384}")
        a(f"s_mov_b32 m0, {sr(S_M0)}")
        for q in range(4):
            a(f"s_mov_b32 {sr(S_T+1)}, {T*262144 + q*15360}")
            a(f"buffer_load_dwordx4 {vr(V_WD + (q & 1))}, {sr(SRD_W,4)}, {sr(S_T+1)} offen offset:{q*1024} lds")
    else:
        a(f"s_add_u32 {sr(S_M0)}, {sr(S_T)}, {KREG + slot*16384}")
        a(f"s_mov_b32 m0, {sr(S_M0)}")
        a("s_nop 0")
        for q in range(4):
            a(f"buffer_load_dwordx4 {vr(V_KD + q)}, {sr(SRD_K,4)}, {sr(S_KOFF)} offen offset:{q*1024} lds")
        a(f"s_add_u32 {sr(S_M0)}, {sr(S_T)}, {VREG + slot*16384}")
        a(f"s_mov_b32 m0, {sr(S_M0)}")
        a("s_nop 0")
        for q in range(4):
            a(f"buffer_load_dwordx4 {vr(V_VD + (q & 1))}, {sr(SRD_V,4)}, {sr(S_KOFF)} offen offset:{q*1024} lds")
        a(f"s_add_u32 {sr(S_KOFF)}, {sr(S_KOFF)}, 16384")


def emit_pv(a, slot, bfrag):
    seq = [(j, t) for j in range(2) for t in range(8)]

    def rd(i):
        j, t = seq[i]
        buf = V_VF + 4 * (i % 4)
        for u in range(2):
            imm = slot * 16384 + 8192 * j + 4096 * u + 256 * (t >> 2)
            a(f"ds_read_b64_tr_b16 {vr(buf + 2*u, 2)}, {vr(V_VA + (t & 3))} offset:{imm}")

    for i in range(3):
        rd(i)
    for i, (j, t) in enumerate(seq):
        if i + 3 < 16:
            rd(i + 3)
            a("s_waitcnt lgkmcnt(6)")
        else:
            a(f"s_waitcnt lgkmcnt({2*(15-i)})")
        buf = V_VF + 4 * (i % 4)
        a(f"v_mfma_f32_32x32x16_bf16 {vr(V_O+16*t,16)}, {vr(buf,4)}, {bfrag(j)}, {vr(V_O+16*t,16)}")


def emit_qk(a, slot):
    def rd(s):
        imm = slot * 16384 + (256 if s >= 8 else 0)
        a(f"ds_read_b128 {vr(V_KF + 4*(s % 4), 4)}, {vr(V_KA + (s & 7))} offset:{imm}")
    for s in range(3):
        rd(s)
    for s in range(16):
        if s + 3 < 16:
            rd(s + 3)
            a("s_waitcnt lgkmcnt(3)")
        else:
            a(f"s_waitcnt lgkmcnt({15-s})")
        c = "0" if s == 0 else vr(V_S, 16)
        a(f"v_mfma_f32_32x32x16_bf16 {vr(V_S,16)}, {vr(V_KF+4*(s%4),4)}, {ar(A_Q+4*s,4)}, {c}")


def emit_softmax(a):
    a("s_nop 7")
    a("s_nop 7")
    S = V_S
    a(f"v_max3_f32 {vr(V_T0)}, {vr(S)}, {vr(S+1)}, {vr(S+2)}")
    a(f"v_max3_f32 {vr(V_T1)}, {vr(S+3)}, {vr(S+4)}, {vr(S+5)}")
    a(f"v_max3_f32 {vr(V_T2)}, {vr(S+6)}, {vr(S+7)}, {vr(S+8)}")
    a(f"v_max3_f32 {vr(V_T3)}, {vr(S+9)}, {vr(S+10)}, {vr(S+11)}")
    a(f"v_max3_f32 {vr(V_T0)}, {vr(V_T0)}, {vr(S+12)}, {vr(S+13)}")
    a(f"v_max3_f32 {vr(V_T1)}, {vr(V_T1)}, {vr(S+14)}, {vr(S+15)}")
    a(f"v_max3_f32 {vr(V_T0)}, {vr(V_T0)}, {vr(V_T1)}, {vr(V_T2)}")
    a(f"v_max_f32 {vr(V_T0)}, {vr(V_T0)}, {vr(V_T3)}")
    a(f"v_mov_b32 {vr(V_T1)}, {vr(V_T0)}")
    a("s_nop 1")
    a(f"v_permlane32_swap_b32 {vr(V_T0)}, {vr(V_T1)}")
    a("s_nop 1")
    a(f"v_max3_f32 {vr(V_T0)}, {vr(V_T0)}, {vr(V_T1)}, {vr(V_M)}")
    a(f"v_sub_f32 {vr(V_T1)}, {vr(V_M)}, {vr(V_T0)}")
    a(f"v_mul_f32 {vr(V_T1)}, {sr(S_C1)}, {vr(V_T1)}")
    a(f"v_exp_f32 {vr(V_AL)}, {vr(V_T1)}")
    a(f"v_mov_b32 {vr(V_M)}, {vr(V_T0)}")
    a(f"v_mul_f32 {vr(V_MC)}, {sr(S_C1)}, {vr(V_T0)}")
    for i in range(16):
        a(f"v_fma_f32 {vr(V_PF+i)}, {vr(S+i)}, {sr(S_C1)}, -{vr(V_MC)}")
    for i in range(16):
        a(f"v_exp_f32 {vr(V_PF+i)}, {vr(V_PF+i)}")
    a("s_nop 0")
    a(f"v_mul_f32 {vr(V_LS)}, {vr(V_LS)}, {vr(V_AL)}")
    for i in range(0, 16, 2):
        a(f"v_add_f32 {vr(V_T0 + (i//2) % 4)}, {vr(V_PF+i)}, {vr(V_PF+i+1)}")
        a(f"v_add_f32 {vr(V_LS)}, {vr(V_LS)}, {vr(V_T0 + (i//2) % 4)}")
    for i in range(8):
        a(f"v_cvt_pk_bf16_f32 {vr(V_P+i)}, {vr(V_PF+2*i)}, {vr(V_PF+2*i+1)}")
    for i in range(128):
        a(f"v_mul_f32 {vr(V_O+i)}, {vr(V_AL)}, {vr(V_O+i)}")
    a("s_nop 1")


def wait_barrier(a, T):
    a(f"s_waitcnt vmcnt({n_dma(T+1) + n_dma(T+2)}) lgkmcnt(0)")
    a("s_barrier")


def gen_attn(a):
    a.label(f"{NAME}_kernel")
    a("s_cmp_ge_u32 s2, 256")
    a("s_cbranch_scc1 L_attn_end")
    a("v_lshrrev_b32 v2, 6, v0")
    a(f"v_and_b32 {vr(V_L)}, 63, v0")
    a("s_nop 0")
    a(f"v_readfirstlane_b32 {sr(S_WAVE)}, v2")
    a(f"s_and_b32 {sr(S_HKV)}, s2, 7")
    a(f"s_lshr_b32 {sr(S_T)}, s2, 3")
    a(f"s_and_b32 {sr(S_T)}, {sr(S_T)}, 1")
    a(f"s_lshl_b32 {sr(S_HQ)}, {sr(S_HKV)}, 1")
    a(f"s_add_u32 {sr(S_HQ)}, {sr(S_HQ)}, {sr(S_T)}")
    a(f"s_lshr_b32 {sr(S_B)}, s2, 4")
    a(f"s_and_b32 {sr(S_B)}, {sr(S_B)}, 7")
    a(f"s_lshr_b32 {sr(S_BLK)}, s2, 7")
    a(f"s_mul_i32 {sr(S_T)}, {sr(S_BLK)}, 40")
    a(f"s_add_u32 s28, s0, {sr(S_T)}")
    a("s_addc_u32 s29, s1, 0")
    a(f"s_load_dwordx8 {sr(S_PTR,8)}, s[28:29], 0")
    a(f"s_load_dwordx2 {sr(S_WS,2)}, s[0:1], 96")
    a(f"s_mov_b32 {sr(S_C1)}, {f32hex(C1)}")
    a(f"v_lshrrev_b32 v2, 5, {vr(V_L)}")
    a(f"v_and_b32 v3, 31, {vr(V_L)}")
    a("s_waitcnt lgkmcnt(0)")
    a(f"s_mul_i32 {sr(S_T)}, {sr(S_B)}, 86016")
    a(f"s_add_u32 {sr(SRD_X)}, {sr(S_PTR)}, {sr(S_T)}")
    a(f"s_addc_u32 {sr(SRD_X+1)}, {sr(S_PTR+1)}, 0")
    a(f"s_mov_b32 {sr(SRD_X+2)}, 86016")
    a(f"s_mov_b32 {sr(SRD_X+3)}, 0x00020000")
    a(f"s_lshl_b32 {sr(S_T)}, {sr(S_B)}, 3")
    a(f"s_add_u32 {sr(S_T)}, {sr(S_T)}, {sr(S_HKV)}")
    a(f"s_lshl_b32 {sr(S_T)}, {sr(S_T)}, 19")
    a(f"s_add_u32 {sr(SRD_K)}, {sr(S_PTR+2)}, {sr(S_T)}")
    a(f"s_addc_u32 {sr(SRD_K+1)}, {sr(S_PTR+3)}, 0")
    a(f"s_mov_b32 {sr(SRD_K+2)}, 524288")
    a(f"s_mov_b32 {sr(SRD_K+3)}, 0x00020000")
    a(f"s_add_u32 {sr(SRD_V)}, {sr(S_PTR+4)}, {sr(S_T)}")
    a(f"s_addc_u32 {sr(SRD_V+1)}, {sr(S_PTR+5)}, 0")
    a(f"s_mov_b32 {sr(SRD_V+2)}, 524288")
    a(f"s_mov_b32 {sr(SRD_V+3)}, 0x00020000")
    a(f"s_lshl_b32 {sr(S_T)}, {sr(S_HQ)}, 9")
    a(f"s_add_u32 {sr(SRD_W)}, {sr(S_PTR+6)}, {sr(S_T)}")
    a(f"s_addc_u32 {sr(SRD_W+1)}, {sr(S_PTR+7)}, 0")
    a(f"s_sub_u32 {sr(SRD_W+2)}, {448*8192}, {sr(S_T)}")
    a(f"s_mov_b32 {sr(SRD_W+3)}, 0x00020000")
    a(f"s_lshl_b32 {sr(S_T)}, {sr(S_BLK)}, 3")
    a(f"s_add_u32 {sr(S_T)}, {sr(S_T)}, {sr(S_B)}")
    a(f"s_mul_i32 {sr(S_T)}, {sr(S_T)}, 3")
    a(f"s_add_u32 {sr(S_T)}, {sr(S_T)}, {sr(S_WAVE)}")
    a(f"s_lshl_b32 {sr(S_T)}, {sr(S_T)}, 18")
    a(f"s_lshl_b32 {sr(S_T+1)}, {sr(S_HQ)}, 14")
    a(f"s_add_u32 {sr(S_T)}, {sr(S_T)}, {sr(S_T+1)}")
    a(f"s_add_u32 {sr(SRD_O)}, {sr(S_WS)}, {sr(S_T)}")
    a(f"s_addc_u32 {sr(SRD_O+1)}, {sr(S_WS+1)}, 0")
    a(f"s_mov_b32 {sr(SRD_O+2)}, 16384")
    a(f"s_mov_b32 {sr(SRD_O+3)}, 0x00020000")
    a("v_xor_b32 v4, v3, v2")
    a("v_lshlrev_b32 v4, 4, v4")
    a("v_lshl_add_u32 v4, v2, 9, v4")
    a(f"s_and_b32 {sr(S_T)}, {sr(S_WAVE)}, 1")
    a(f"s_lshl_b32 {sr(S_T)}, {sr(S_T)}, 7")
    a(f"v_xor_b32 v4, {sr(S_T)}, v4")
    a(f"s_lshl_b32 {sr(S_T)}, {sr(S_WAVE)}, 12")
    a(f"v_add_u32 v4, {sr(S_T)}, v4")
    for q in range(4):
        a(f"v_xor_b32 {vr(V_KD+q)}, {32*q}, v4")
    a("v_lshlrev_b32 v5, 2, v2")
    a("v_xor_b32 v5, v3, v5")
    a("v_lshlrev_b32 v5, 4, v5")
    a("v_lshl_add_u32 v6, v2, 9, v5")
    a(f"v_add_u32 {vr(V_VD)}, {sr(S_T)}, v6")
    a(f"v_xor_b32 {vr(V_VD+1)}, 128, {vr(V_VD)}")
    a("v_lshl_add_u32 v6, v2, 13, v5")
    a(f"s_lshl_b32 {sr(S_T)}, {sr(S_WAVE)}, 16")
    a(f"v_add_u32 {vr(V_WD)}, {sr(S_T)}, v6")
    a(f"v_xor_b32 {vr(V_WD+1)}, 128, {vr(V_WD)}")
    a("v_and_b32 v6, 15, v3")
    a("v_xor_b32 v6, v6, v2")
    a("v_lshlrev_b32 v6, 4, v6")
    a("v_lshl_add_u32 v6, v3, 9, v6")
    for sx in range(8):
        a(f"v_xor_b32 {vr(V_KA+sx)}, {32*sx}, v6")
    a(f"v_bfe_u32 v6, {vr(V_L)}, 2, 2")
    a("v_lshl_add_u32 v7, v2, 2, v6")
    a("v_lshlrev_b32 v7, 9, v7")
    a(f"v_bfe_u32 v8, {vr(V_L)}, 4, 1")
    a("v_lshl_add_u32 v7, v8, 5, v7")
    a(f"v_and_b32 v8, 3, {vr(V_L)}")
    a("v_lshl_add_u32 v7, v8, 3, v7")
    a(f"v_add_u32 v7, {VREG}, v7")
    for tt in range(4):
        a(f"v_xor_b32 v8, {tt}, v6")
        a(f"v_lshl_add_u32 {vr(V_VA+tt)}, v8, 6, v7")
    a(f"s_lshl_b32 {sr(S_T)}, {sr(S_WAVE)}, 5")
    a(f"v_add_u32 v6, {sr(S_T)}, v3")
    a("v_mul_u32_u24 v6, 896, v6")
    a(f"v_lshl_add_u32 {vr(V_X)}, v2, 3, v6")
    a(f"v_lshlrev_b32 {vr(V_OST)}, 4, {vr(V_L)}")
    a(f"s_mov_b32 {sr(S_KOFF)}, 0")
    a(f"s_lshl_b32 {sr(S_T)}, {sr(S_WAVE)}, 12")
    a(f"s_cmp_eq_u32 {sr(S_WAVE)}, 3")
    a("s_cbranch_scc1 L_loader")

    for T in range(NWQ):
        for j in range(2):
            for u in range(2):
                off = (32 * T + 16 * j + 8 * u) * 2
                a(f"buffer_load_dwordx2 {ar(A_X + (T*2+j)*4 + 2*u, 2)}, {vr(V_X)}, {sr(SRD_X,4)}, 0 offen offset:{off}")
    for i in range(128):
        a(f"v_mov_b32 {vr(V_O+i)}, 0")
    for T in range(3):
        emit_dma(a, T, T % NS)
    for T in range(NWQ):
        wait_barrier(a, T)
        emit_dma(a, T + 3, (T + 3) % NS)
        emit_pv(a, T % NS, lambda j, T=T: ar(A_X + (T*2+j)*4, 4))
    a("s_nop 7")
    a("s_nop 7")
    for t in range(8):
        for jj in range(2):
            base = V_O + 16 * t + 8 * jj
            for q in range(4):
                a(f"v_cvt_pk_bf16_f32 {vr(V_T0+q)}, {vr(base+2*q)}, {vr(base+2*q+1)}")
            a("s_nop 1")
            a(f"v_permlane32_swap_b32 {vr(V_T0)}, {vr(V_T2)}")
            a(f"v_permlane32_swap_b32 {vr(V_T1)}, {vr(V_T3)}")
            a("s_nop 1")
            for q in range(4):
                a(f"v_accvgpr_write_b32 {ar(A_Q + (2*t+jj)*4 + q)}, {vr(V_T0+q)}")
    for i in range(128):
        a(f"v_mov_b32 {vr(V_O+i)}, 0")
    a(f"v_mov_b32 {vr(V_M)}, 0xff7fffff")
    a(f"v_mov_b32 {vr(V_LS)}, 0")
    a(f"s_mov_b32 {sr(S_CNT)}, 0")
    a.label("L_attn_loop")
    for ts in range(4):
        T = NWQ + ts
        slot = (NWQ + ts) % NS
        wait_barrier(a, T)
        emit_dma(a, T + 3, (slot + 3) % NS)
        emit_qk(a, slot)
        emit_softmax(a)
        emit_pv(a, slot, lambda j: vr(V_P + 4*j, 4))
    a(f"s_add_u32 {sr(S_CNT)}, {sr(S_CNT)}, 1")
    a(f"s_cmp_lt_u32 {sr(S_CNT)}, {NKV//4}")
    a("s_cbranch_scc1 L_attn_loop")
    a("s_nop 7")
    a("s_nop 7")
    a(f"v_mov_b32 {vr(V_T0)}, {vr(V_LS)}")
    a(f"v_mov_b32 {vr(V_T1)}, {vr(V_LS)}")
    a("s_nop 1")
    a(f"v_permlane32_swap_b32 {vr(V_T0)}, {vr(V_T1)}")
    a("s_nop 1")
    a(f"v_add_f32 {vr(V_T0)}, {vr(V_T0)}, {vr(V_T1)}")
    a(f"v_rcp_f32 {vr(V_T0)}, {vr(V_T0)}")
    a("s_nop 0")
    for t in range(8):
        for jj in range(2):
            base = V_O + 16 * t + 8 * jj
            for q in range(8):
                a(f"v_mul_f32 {vr(base+q)}, {vr(V_T0)}, {vr(base+q)}")
            for q in range(4):
                a(f"v_cvt_pk_bf16_f32 {vr(V_KF + 4*((2*t+jj) % 4) + q)}, {vr(base+2*q)}, {vr(base+2*q+1)}")
            a(f"s_mov_b32 {sr(S_T+1)}, {(2*t+jj)*1024}")
            a(f"buffer_store_dwordx4 {vr(V_KF + 4*((2*t+jj) % 4), 4)}, {vr(V_OST)}, {sr(SRD_O,4)}, {sr(S_T+1)} offen")
    a("s_waitcnt vmcnt(0)")
    a("s_branch L_attn_end")

    a.label("L_loader")
    for T in range(3):
        emit_dma(a, T, T % NS)
    for T in range(NWQ):
        wait_barrier(a, T)
        emit_dma(a, T + 3, (T + 3) % NS)
    a(f"s_mov_b32 {sr(S_CNT)}, 0")
    a.label("L_loader_loop")
    for ts in range(4):
        T = NWQ + ts
        slot = (NWQ + ts) % NS
        wait_barrier(a, T)
        emit_dma(a, T + 3, (slot + 3) % NS)
    a(f"s_add_u32 {sr(S_CNT)}, {sr(S_CNT)}, 1")
    a(f"s_cmp_lt_u32 {sr(S_CNT)}, {NKV//4}")
    a("s_cbranch_scc1 L_loader_loop")
    a("s_waitcnt vmcnt(0)")
    a.label("L_attn_end")
    a("s_endpgm")


NST = 32
LDS2 = 32768 + 64
O2_ACC = 64
O2_OF = 96
O2_WF = 32
O2_WA = 20
O2_D = 12
O2_OV = 13
O2_T = 2
PART_OFF = 16 << 20


def emit_dma2(a, slot):
    a(f"s_add_u32 {sr(S_M0)}, {sr(S_T)}, {slot*8192}")
    a(f"s_mov_b32 m0, {sr(S_M0)}")
    for q in range(2):
        a(f"s_add_u32 {sr(S_T+1)}, {sr(S_KOFF)}, {q*(7168-1024)}")
        a(f"buffer_load_dwordx4 {vr(O2_D)}, {sr(SRD_W,4)}, {sr(S_T+1)} offen offset:{q*1024} lds")
    a(f"s_add_u32 {sr(S_KOFF)}, {sr(S_KOFF)}, {64*896}")


def emit_oload(a, buf):
    for j in range(4):
        a(f"buffer_load_dwordx4 {vr(O2_OF + 16*buf + 4*j, 4)}, {vr(O2_OV)}, {sr(SRD_O,4)}, {sr(S_T+2)} offen offset:{j*1024}")
    a(f"s_add_u32 {sr(S_T+2)}, {sr(S_T+2)}, 4096")


def emit_stage2(a, slot):
    seq = [(j, nt) for j in range(4) for nt in range(2)]
    def rd(i):
        j, nt = seq[i]
        for u in range(2):
            imm = slot * 8192 + (16 * j + 8 * u) * 128
            a(f"ds_read_b64_tr_b16 {vr(O2_WF + 4*(i%4) + 2*u, 2)}, {vr(O2_WA+nt)} offset:{imm}")
    for i in range(3):
        rd(i)
    for i, (j, nt) in enumerate(seq):
        if i + 3 < 8:
            rd(i + 3)
            a("s_waitcnt lgkmcnt(6)")
        else:
            a(f"s_waitcnt lgkmcnt({2*(7-i)})")
        a(f"v_mfma_f32_32x32x16_bf16 {vr(O2_ACC+16*nt,16)}, {vr(O2_WF+4*(i%4),4)}, {vr(O2_OF+16*slot+4*j,4)}, {vr(O2_ACC+16*nt,16)}")


def gen_oproj(a):
    a.label("oproj_kernel")
    a("s_cmp_ge_u32 s2, 224")
    a("s_cbranch_scc1 L_op_end")
    a("v_lshrrev_b32 v2, 6, v0")
    a(f"v_and_b32 {vr(V_L)}, 63, v0")
    a("s_nop 0")
    a(f"v_readfirstlane_b32 {sr(S_WAVE)}, v2")
    a(f"s_and_b32 {sr(S_B)}, s2, 7")
    a(f"s_lshr_b32 {sr(S_BLK)}, s2, 3")
    a(f"s_and_b32 {sr(S_BLK)}, {sr(S_BLK)}, 1")
    a(f"s_lshr_b32 {sr(S_HKV)}, s2, 4")
    a(f"s_and_b32 {sr(S_HKV)}, {sr(S_HKV)}, 1")
    a(f"s_lshr_b32 {sr(S_HQ)}, s2, 5")
    a(f"s_mul_i32 {sr(S_T)}, {sr(S_BLK)}, 40")
    a(f"s_add_u32 s28, s0, {sr(S_T)}")
    a("s_addc_u32 s29, s1, 0")
    a(f"s_load_dwordx2 {sr(S_PTR,2)}, s[28:29], 32")
    a(f"s_load_dwordx4 {sr(S_PTR+4,4)}, s[0:1], 80")
    a(f"s_load_dwordx2 {sr(S_PTR+2,2)}, s[0:1], 96")
    a(f"v_lshrrev_b32 v2, 5, {vr(V_L)}")
    a(f"v_and_b32 v3, 31, {vr(V_L)}")
    a("s_waitcnt lgkmcnt(0)")
    a(f"s_mul_i32 {sr(S_T)}, {sr(S_HKV)}, {2048*896}")
    a(f"s_add_u32 {sr(SRD_W)}, {sr(S_PTR)}, {sr(S_T)}")
    a(f"s_addc_u32 {sr(SRD_W+1)}, {sr(S_PTR+1)}, 0")
    a(f"s_sub_u32 {sr(SRD_W+2)}, {4096*896}, {sr(S_T)}")
    a(f"s_mov_b32 {sr(SRD_W+3)}, 0x00020000")
    a(f"s_lshl_b32 {sr(S_T)}, {sr(S_BLK)}, 3")
    a(f"s_add_u32 {sr(S_T+3)}, {sr(S_T)}, {sr(S_B)}")
    a(f"s_mul_i32 {sr(S_T)}, {sr(S_T+3)}, 3")
    a(f"s_add_u32 {sr(S_T)}, {sr(S_T)}, {sr(S_WAVE)}")
    a(f"s_lshl_b32 {sr(S_T)}, {sr(S_T)}, 18")
    a(f"s_lshl_b32 {sr(S_T+1)}, {sr(S_HKV)}, 17")
    a(f"s_add_u32 {sr(S_T)}, {sr(S_T)}, {sr(S_T+1)}")
    a(f"s_add_u32 {sr(SRD_O)}, {sr(S_PTR+2)}, {sr(S_T)}")
    a(f"s_addc_u32 {sr(SRD_O+1)}, {sr(S_PTR+3)}, 0")
    a(f"s_mov_b32 {sr(SRD_O+2)}, 0x2000000")
    a(f"s_mov_b32 {sr(SRD_O+3)}, 0x00020000")
    a(f"s_mul_i32 {sr(S_T+3)}, {sr(S_T+3)}, 7")
    a(f"s_add_u32 {sr(S_T+3)}, {sr(S_T+3)}, {sr(S_HQ)}")
    a(f"s_mul_i32 {sr(S_T)}, {sr(S_T+3)}, 49152")
    a(f"s_add_u32 {sr(S_T)}, {sr(S_T)}, {PART_OFF}")
    a(f"s_add_u32 {sr(SRD_X)}, {sr(S_PTR+2)}, {sr(S_T)}")
    a(f"s_addc_u32 {sr(SRD_X+1)}, {sr(S_PTR+3)}, 0")
    a(f"s_mov_b32 {sr(SRD_X+2)}, 49152")
    a(f"s_mov_b32 {sr(SRD_X+3)}, 0x00020000")
    a(f"s_mov_b32 {sr(SRD_K)}, {sr(S_PTR+4)}")
    a(f"s_mov_b32 {sr(SRD_K+1)}, {sr(S_PTR+5)}")
    a(f"s_mov_b32 {sr(SRD_K+2)}, {8*96*896*2}")
    a(f"s_mov_b32 {sr(SRD_K+3)}, 0x00020000")
    a(f"s_mov_b32 {sr(SRD_V)}, {sr(S_PTR+6)}")
    a(f"s_mov_b32 {sr(SRD_V+1)}, {sr(S_PTR+7)}")
    a(f"s_mov_b32 {sr(SRD_V+2)}, 256")
    a(f"s_mov_b32 {sr(SRD_V+3)}, 0x00020000")
    a(f"v_lshrrev_b32 v4, 3, {vr(V_L)}")
    a("v_mul_u32_u24 v4, 896, v4")
    a(f"v_and_b32 v5, 7, {vr(V_L)}")
    a(f"v_bfe_u32 v6, {vr(V_L)}, 4, 1")
    a("v_lshlrev_b32 v6, 2, v6")
    a("v_xor_b32 v5, v5, v6")
    a("v_lshl_add_u32 v4, v5, 4, v4")
    a(f"s_lshl_b32 {sr(S_T)}, {sr(S_HQ)}, 7")
    a(f"s_mul_i32 {sr(S_T+1)}, {sr(S_WAVE)}, {2*7168}")
    a(f"s_add_u32 {sr(S_T)}, {sr(S_T)}, {sr(S_T+1)}")
    a(f"v_add_u32 {vr(O2_D)}, {sr(S_T)}, v4")
    a(f"v_bfe_u32 v6, {vr(V_L)}, 2, 2")
    a("v_lshl_add_u32 v7, v2, 2, v6")
    a("v_lshlrev_b32 v7, 7, v7")
    a(f"v_bfe_u32 v8, {vr(V_L)}, 4, 1")
    a("v_lshl_add_u32 v7, v8, 5, v7")
    a(f"v_and_b32 v8, 3, {vr(V_L)}")
    a("v_lshl_add_u32 v7, v8, 3, v7")
    a("v_lshrrev_b32 v8, 1, v6")
    for nt in range(2):
        a(f"v_xor_b32 v9, {nt}, v8")
        a(f"v_lshl_add_u32 {vr(O2_WA+nt)}, v9, 6, v7")
    a(f"v_lshlrev_b32 {vr(O2_OV)}, 4, {vr(V_L)}")
    a(f"s_mov_b32 {sr(S_KOFF)}, 0")
    a(f"s_mov_b32 {sr(S_T+2)}, 0")
    a(f"s_lshl_b32 {sr(S_T)}, {sr(S_WAVE)}, 11")
    a(f"s_cmp_eq_u32 {sr(S_WAVE)}, 3")
    a("s_cbranch_scc1 L_op_loader")
    for i in range(32):
        a(f"v_mov_b32 {vr(O2_ACC+i)}, 0")
    emit_oload(a, 0)
    emit_dma2(a, 0)
    emit_oload(a, 1)
    emit_dma2(a, 1)
    emit_dma2(a, 2)
    a(f"s_mov_b32 {sr(S_CNT)}, 0")
    a.label("L_op_loop")
    for st in range(4):
        a("s_waitcnt vmcnt(8) lgkmcnt(0)")
        a("s_barrier")
        emit_oload(a, (st + 2) % 4)
        emit_dma2(a, (st + 3) % 4)
        emit_stage2(a, st)
    a(f"s_add_u32 {sr(S_CNT)}, {sr(S_CNT)}, 1")
    a(f"s_cmp_lt_u32 {sr(S_CNT)}, {NST//4}")
    a("s_cbranch_scc1 L_op_loop")
    a("s_nop 7")
    a("s_nop 7")
    a(f"s_lshl_b32 {sr(S_T+1)}, {sr(S_HKV)}, 0")
    a(f"s_mul_i32 {sr(S_T+1)}, {sr(S_T+1)}, 24576")
    a(f"s_lshl_b32 {sr(S_T+2)}, {sr(S_WAVE)}, 13")
    a(f"s_add_u32 {sr(S_T+1)}, {sr(S_T+1)}, {sr(S_T+2)}")
    for i in range(8):
        a(f"buffer_store_dwordx4 {vr(O2_ACC+4*i,4)}, {vr(O2_OV)}, {sr(SRD_X,4)}, {sr(S_T+1)} offen offset:{(i%4)*1024} sc0 sc1" if i < 4 else
          f"buffer_store_dwordx4 {vr(O2_ACC+4*i,4)}, {vr(O2_OV)}, {sr(SRD_X,4)}, {sr(S_T+3)} offen offset:{(i%4)*1024} sc0 sc1")
        if i == 3:
            a(f"s_add_u32 {sr(S_T+3)}, {sr(S_T+1)}, 4096")
    a("s_branch L_op_join")
    a.label("L_op_loader")
    for st in range(3):
        emit_dma2(a, st)
    a(f"s_mov_b32 {sr(S_CNT)}, 0")
    a.label("L_op_lloop")
    for st in range(4):
        a("s_waitcnt vmcnt(4) lgkmcnt(0)")
        a("s_barrier")
        emit_dma2(a, (st + 3) % 4)
    a(f"s_add_u32 {sr(S_CNT)}, {sr(S_CNT)}, 1")
    a(f"s_cmp_lt_u32 {sr(S_CNT)}, {NST//4}")
    a("s_cbranch_scc1 L_op_lloop")
    a.label("L_op_join")
    a("s_waitcnt vmcnt(0)")
    a("s_barrier")
    a(f"s_lshl_b32 {sr(S_T+4)}, {sr(S_BLK)}, 3")
    a(f"s_add_u32 {sr(S_T+4)}, {sr(S_T+4)}, {sr(S_B)}")
    a(f"s_mul_i32 {sr(S_T+4)}, {sr(S_T+4)}, 7")
    a(f"s_add_u32 {sr(S_T+4)}, {sr(S_T+4)}, {sr(S_HQ)}")
    a(f"s_cmp_lg_u32 {sr(S_WAVE)}, 0")
    a("s_cbranch_scc1 L_op_wait")
    a(f"s_and_b32 {sr(S_T+5)}, {sr(S_T+4)}, 3")
    a(f"s_lshl_b32 {sr(S_T+5)}, {sr(S_T+5)}, 3")
    a(f"s_lshl_b32 {sr(S_T+6)}, 1, {sr(S_T+5)}")
    a(f"s_and_b32 {sr(S_T+7)}, {sr(S_T+4)}, 0xfc")
    a(f"v_mov_b32 v4, {sr(S_T+6)}")
    a(f"v_mov_b32 v5, {sr(S_T+7)}")
    a("v_cmp_eq_u32 vcc, 0, v1")
    a("s_and_saveexec_b64 s[60:61], vcc")
    a(f"buffer_atomic_add v4, v5, {sr(SRD_V,4)}, 0 offen sc0")
    a("s_waitcnt vmcnt(0)")
    a(f"v_lshrrev_b32 v4, {sr(S_T+5)}, v4")
    a("v_and_b32 v4, 0xff, v4")
    a("v_mov_b32 v5, 32768")
    a("ds_write_b32 v5, v4")
    a("s_mov_b64 exec, s[60:61]")
    a.label("L_op_wait")
    a("s_waitcnt lgkmcnt(0)")
    a("s_barrier")
    a("v_mov_b32 v5, 32768")
    a("ds_read_b32 v4, v5")
    a("s_waitcnt lgkmcnt(0)")
    a(f"v_readfirstlane_b32 {sr(S_T+5)}, v4")
    a("s_nop 3")
    a(f"s_cmp_eq_u32 {sr(S_T+5)}, 0")
    a("s_cbranch_scc1 L_op_end")
    a(f"s_cmp_eq_u32 {sr(S_WAVE)}, 3")
    a("s_cbranch_scc1 L_op_end")
    a(f"s_xor_b32 {sr(S_T+1)}, {sr(S_HKV)}, 1")
    a(f"s_mul_i32 {sr(S_T+1)}, {sr(S_T+1)}, 24576")
    a(f"s_lshl_b32 {sr(S_T+2)}, {sr(S_WAVE)}, 13")
    a(f"s_add_u32 {sr(S_T+1)}, {sr(S_T+1)}, {sr(S_T+2)}")
    a(f"s_add_u32 {sr(S_T+3)}, {sr(S_T+1)}, 4096")
    for i in range(8):
        so = S_T + 1 if i < 4 else S_T + 3
        a(f"buffer_load_dwordx4 {vr(O2_OF+4*i,4)}, {vr(O2_OV)}, {sr(SRD_X,4)}, {sr(so)} offen offset:{(i%4)*1024} sc0 sc1")
    a("s_waitcnt vmcnt(0)")
    for i in range(32):
        a(f"v_add_f32 {vr(O2_ACC+i)}, {vr(O2_ACC+i)}, {vr(O2_OF+i)}")
    a(f"s_mul_i32 {sr(S_T+1)}, {sr(S_B)}, 96")
    a(f"s_lshl_b32 {sr(S_T+2)}, {sr(S_WAVE)}, 5")
    a(f"s_add_u32 {sr(S_T+1)}, {sr(S_T+1)}, {sr(S_T+2)}")
    a(f"v_add_u32 v4, {sr(S_T+1)}, v3")
    a("v_mul_u32_u24 v4, 1792, v4")
    a(f"s_mul_i32 {sr(S_T+1)}, {sr(S_BLK)}, 896")
    a(f"s_lshl_b32 {sr(S_T+2)}, {sr(S_HQ)}, 7")
    a(f"s_add_u32 {sr(S_T+1)}, {sr(S_T+1)}, {sr(S_T+2)}")
    a(f"v_add_u32 v4, {sr(S_T+1)}, v4")
    a("v_lshl_add_u32 v4, v2, 3, v4")
    for nt in range(2):
        for g in range(4):
            b0 = O2_ACC + 16 * nt + 4 * g
            a(f"v_cvt_pk_bf16_f32 v6, {vr(b0)}, {vr(b0+1)}")
            a(f"v_cvt_pk_bf16_f32 v7, {vr(b0+2)}, {vr(b0+3)}")
            a(f"buffer_store_dwordx2 v[6:7], v4, {sr(SRD_K,4)}, 0 offen offset:{(32*nt+8*g)*2}")
            a("s_nop 1")
    a.label("L_op_end")
    a("s_endpgm")


HEADER = """; @launch kernel={n}_kernel grid=(256,1,1) block=(256,1,1) lds={lds1}
; @launch kernel=oproj_kernel grid=(224,1,1) block=(256,1,1) lds={lds2}
.amdgcn_target "amdgcn-amd-amdhsa--gfx950"
.text
"""


def kd(name, nvgpr, accum):
    return f""".amdhsa_kernel {name}
  .amdhsa_next_free_vgpr {nvgpr}
  .amdhsa_next_free_sgpr 102
  .amdhsa_accum_offset {accum}
  .amdhsa_group_segment_fixed_size 0
  .amdhsa_kernarg_size 104
  .amdhsa_user_sgpr_count 2
  .amdhsa_user_sgpr_kernarg_segment_ptr 1
  .amdhsa_system_sgpr_workgroup_id_x 1
.end_amdhsa_kernel
"""


def main():
    a = Asm()
    out = HEADER.format(n=NAME, lds1=LDS1, lds2=LDS2)
    out += f".globl {NAME}_kernel\n.p2align 8\n.type {NAME}_kernel,@function\n"
    gen_attn(a)
    out += a.text()
    a = Asm()
    out += ".globl oproj_kernel\n.p2align 8\n.type oproj_kernel,@function\n"
    gen_oproj(a)
    out += a.text()
    out += '.section .rodata,"a"\n.p2align 6\n'
    out += kd(f"{NAME}_kernel", 256 + 176, 256)
    out += ".p2align 6\n" + kd("oproj_kernel", 192, 192)
    sys.stdout.write(out)


if __name__ == "__main__":
    main()
```

```python
import math
import sys

NAME = "concat_heads__gqa_block_cached__gqa_block_cached__near_ridge"


class Asm:
    def __init__(self):
        self.lines = []

    def __call__(self, s):
        self.lines.append("    " + s)

    def label(self, s):
        self.lines.append(s + ":")

    def comment(self, s):
        self.lines.append("    ; " + s)

    def text(self):
        return "\n".join(self.lines) + "\n"


def vr(a, n=1):
    return f"v{a}" if n == 1 else f"v[{a}:{a+n-1}]"


def ar(a, n=1):
    return f"a{a}" if n == 1 else f"a[{a}:{a+n-1}]"


def sr(a, n=1):
    return f"s{a}" if n == 1 else f"s[{a}:{a+n-1}]"


C1 = math.log2(math.e) / 16.0


def f32hex(x):
    import struct
    return "0x%08x" % struct.unpack("<I", struct.pack("<f", x))[0]


import os
LOOPN = int(os.environ.get("LOOPN", "8"))
NS = 4
KREG = 0
VREG = 65536
NWQ = 14
NKV = 32
LDS1 = 131072

V_L = 1
V_T0, V_T1, V_T2, V_T3 = 2, 3, 4, 5
V_M = 6
V_LS = 7
V_MC = 8
V_AL = 9
V_X = 10
V_OST = 11
V_KD = 12
V_VD = 16
V_WD = 18
V_KA = 20
V_VA = 28
V_VA2 = 100
V_KF = 32
V_VF = 104
V_P = 64
V_S = 72
V_PF = 0
V_O = 128

A_Q = 0
A_X = 64

S_WAVE = 3
S_BLK, S_B, S_HKV, S_HQ = 4, 5, 6, 7
SRD_W, SRD_K, SRD_V, SRD_X, SRD_O = 8, 12, 16, 20, 24
S_PTR = 32
S_WS = 40
S_C1 = 42
S_KOFF = 43
S_CNT = 44
S_M0 = 45
S_T = 46
S_THR = 50


def n_dma(T):
    if T >= NWQ + NKV:
        return 8
    return 4 if T < NWQ else 8


def emit_dma(a, T, slot):
    if T < NWQ:
        a(f"s_add_u32 {sr(S_M0)}, {sr(S_T)}, {(VREG if (T % 8) < 4 else KREG) + (T % 4)*16384}")
        a(f"s_mov_b32 m0, {sr(S_M0)}")
        for q in range(4):
            a(f"s_mov_b32 {sr(S_T+1)}, {T*262144 + q*15360}")
            a(f"buffer_load_dwordx4 {vr(V_WD + (q & 1))}, {sr(SRD_W,4)}, {sr(S_T+1)} offen offset:{q*1024} lds")
    else:
        a(f"s_add_u32 {sr(S_M0)}, {sr(S_T)}, {KREG + slot*16384}")
        a(f"s_mov_b32 m0, {sr(S_M0)}")
        a("s_nop 0")
        for q in range(4):
            a(f"buffer_load_dwordx4 {vr(V_KD + q)}, {sr(SRD_K,4)}, {sr(S_KOFF)} offen offset:{q*1024} lds")
        a(f"s_add_u32 {sr(S_M0)}, {sr(S_T)}, {VREG + slot*16384}")
        a(f"s_mov_b32 m0, {sr(S_M0)}")
        a("s_nop 0")
        for q in range(4):
            a(f"buffer_load_dwordx4 {vr(V_VD + (q & 1))}, {sr(SRD_V,4)}, {sr(S_KOFF)} offen offset:{q*1024} lds")
        a(f"s_add_u32 {sr(S_KOFF)}, {sr(S_KOFF)}, 16384")


def emit_pv(a, slot, bfrag, va=None):
    va = V_VA if va is None else va
    seq = [(j, t) for j in range(2) for t in range(8)]

    def rd(i):
        j, t = seq[i]
        buf = V_VF + 4 * (i % 6)
        for u in range(2):
            imm = slot * 16384 + 8192 * j + 4096 * u + 256 * (t >> 2)
            a(f"ds_read_b64_tr_b16 {vr(buf + 2*u, 2)}, {vr(va + (t & 3))} offset:{imm}")

    for i in range(5):
        rd(i)
    for i, (j, t) in enumerate(seq):
        if i + 5 < 16:
            rd(i + 5)
            a("s_waitcnt lgkmcnt(10)")
        else:
            a(f"s_waitcnt lgkmcnt({2*(15-i)})")
        buf = V_VF + 4 * (i % 6)
        a(f"v_mfma_f32_32x32x16_bf16 {vr(V_O+16*t,16)}, {vr(buf,4)}, {bfrag(j)}, {vr(V_O+16*t,16)}")


def emit_qk(a, slot, sbuf, valu=None):
    S = V_S + 16 * sbuf
    def rd(s):
        imm = slot * 16384 + (256 if s >= 8 else 0)
        a(f"ds_read_b128 {vr(V_KF + 4*(s % 8), 4)}, {vr(V_KA + (s & 7))} offset:{imm}")
    for s in range(7):
        rd(s)
    for s in range(16):
        if s + 7 < 16:
            rd(s + 7)
            a("s_waitcnt lgkmcnt(7)")
        else:
            a(f"s_waitcnt lgkmcnt({15-s})")
        c = "0" if s == 0 else vr(S, 16)
        a(f"v_mfma_f32_32x32x16_bf16 {vr(S,16)}, {vr(V_KF+4*(s%8),4)}, {ar(A_Q+4*s,4)}, {c}")
        if valu is not None and s < len(valu):
            valu[s]()


def softmax_segments(a, sbuf, uid):
    S = V_S + 16 * sbuf
    segs = []
    def seg0():
        a(f"v_max3_f32 {vr(V_T0)}, {vr(S)}, {vr(S+1)}, {vr(S+2)}")
        a(f"v_max3_f32 {vr(V_T1)}, {vr(S+3)}, {vr(S+4)}, {vr(S+5)}")
        a(f"v_max3_f32 {vr(V_T2)}, {vr(S+6)}, {vr(S+7)}, {vr(S+8)}")
        a(f"v_max3_f32 {vr(V_T3)}, {vr(S+9)}, {vr(S+10)}, {vr(S+11)}")
        a(f"v_max3_f32 {vr(V_T0)}, {vr(V_T0)}, {vr(S+12)}, {vr(S+13)}")
    def seg1():
        a(f"v_max3_f32 {vr(V_T1)}, {vr(V_T1)}, {vr(S+14)}, {vr(S+15)}")
        a(f"v_max3_f32 {vr(V_T0)}, {vr(V_T0)}, {vr(V_T1)}, {vr(V_T2)}")
        a(f"v_max_f32 {vr(V_T0)}, {vr(V_T0)}, {vr(V_T3)}")
        a(f"v_mov_b32 {vr(V_T1)}, {vr(V_T0)}")
    def seg2():
        a(f"v_permlane32_swap_b32 {vr(V_T0)}, {vr(V_T1)}")
        a("s_nop 1")
        a(f"v_max_f32 {vr(V_T0)}, {vr(V_T0)}, {vr(V_T1)}")
        a(f"v_add_f32 {vr(V_T1)}, {sr(S_THR)}, {vr(V_M)}")
        a(f"v_cmp_gt_f32 vcc, {vr(V_T0)}, {vr(V_T1)}")
        a("s_nop 3")
        a(f"s_cbranch_vccz L_nors_{uid}")
        a(f"v_max_f32 {vr(V_T0)}, {vr(V_T0)}, {vr(V_M)}")
        a(f"v_sub_f32 {vr(V_T1)}, {vr(V_M)}, {vr(V_T0)}")
        a(f"v_mul_f32 {vr(V_T1)}, {sr(S_C1)}, {vr(V_T1)}")
        a(f"v_exp_f32 {vr(V_AL)}, {vr(V_T1)}")
        a(f"v_mov_b32 {vr(V_M)}, {vr(V_T0)}")
        a(f"v_mul_f32 {vr(V_MC)}, {sr(S_C1)}, {vr(V_T0)}")
        a(f"v_mul_f32 {vr(V_LS)}, {vr(V_LS)}, {vr(V_AL)}")
        for i in range(128):
            a(f"v_mul_f32 {vr(V_O+i)}, {vr(V_AL)}, {vr(V_O+i)}")
        a.label(f"L_nors_{uid}")
    segs += [seg0, seg1, seg2]
    def mk_fe(i0):
        def f():
            for i in range(i0, i0 + 2):
                a(f"v_fma_f32 {vr(S+i)}, {vr(S+i)}, {sr(S_C1)}, -{vr(V_MC)}")
            for i in range(i0, i0 + 2):
                a(f"v_exp_f32 {vr(S+i)}, {vr(S+i)}")
        return f
    for i0 in range(0, 16, 2):
        segs.append(mk_fe(i0))
    def mk_sum(h):
        def f():
            for i in range(h * 8, h * 8 + 8, 2):
                a(f"v_add_f32 {vr(V_T0 + (i//2) % 4)}, {vr(S+i)}, {vr(S+i+1)}")
            a(f"v_add_f32 {vr(V_T0)}, {vr(V_T0)}, {vr(V_T1)}")
            a(f"v_add_f32 {vr(V_T2)}, {vr(V_T2)}, {vr(V_T3)}")
            a(f"v_add_f32 {vr(V_LS)}, {vr(V_LS)}, {vr(V_T0)}")
            a(f"v_add_f32 {vr(V_LS)}, {vr(V_LS)}, {vr(V_T2)}")
        return f
    def mk_cvt(h):
        def f():
            for i in range(h * 4, h * 4 + 4):
                a(f"v_cvt_pk_bf16_f32 {vr(V_P+i)}, {vr(S+2*i)}, {vr(S+2*i+1)}")
        return f
    segs += [mk_sum(0), mk_sum(1), mk_cvt(0), mk_cvt(1)]
    assert len(segs) == 15
    return segs


def wait_barrier(a, T):
    a(f"s_waitcnt vmcnt({n_dma(T+1) + n_dma(T+2)}) lgkmcnt(0)")
    a("s_barrier")


def gen_attn(a):
    a.label(f"{NAME}_kernel")
    a("s_cmp_ge_u32 s2, 256")
    a("s_cbranch_scc1 L_attn_end")
    a("v_lshrrev_b32 v2, 6, v0")
    a(f"v_and_b32 {vr(V_L)}, 63, v0")
    a("s_nop 0")
    a(f"v_readfirstlane_b32 {sr(S_WAVE)}, v2")
    a(f"s_and_b32 {sr(S_HKV)}, s2, 7")
    a(f"s_lshr_b32 {sr(S_T)}, s2, 3")
    a(f"s_and_b32 {sr(S_T)}, {sr(S_T)}, 1")
    a(f"s_lshl_b32 {sr(S_HQ)}, {sr(S_HKV)}, 1")
    a(f"s_add_u32 {sr(S_HQ)}, {sr(S_HQ)}, {sr(S_T)}")
    a(f"s_lshr_b32 {sr(S_B)}, s2, 4")
    a(f"s_and_b32 {sr(S_B)}, {sr(S_B)}, 7")
    a(f"s_lshr_b32 {sr(S_BLK)}, s2, 7")
    a(f"s_mul_i32 {sr(S_T)}, {sr(S_BLK)}, 40")
    a(f"s_add_u32 s28, s0, {sr(S_T)}")
    a("s_addc_u32 s29, s1, 0")
    a(f"s_load_dwordx8 {sr(S_PTR,8)}, s[28:29], 0")
    a(f"s_load_dwordx2 {sr(S_WS,2)}, s[0:1], 96")
    a(f"s_mov_b32 {sr(S_C1)}, {f32hex(C1)}")
    a(f"s_mov_b32 {sr(S_THR)}, {f32hex(8.0 / C1)}")
    a(f"v_lshrrev_b32 v2, 5, {vr(V_L)}")
    a(f"v_and_b32 v3, 31, {vr(V_L)}")
    a("s_waitcnt lgkmcnt(0)")
    a(f"s_mul_i32 {sr(S_T)}, {sr(S_B)}, 86016")
    a(f"s_add_u32 {sr(SRD_X)}, {sr(S_PTR)}, {sr(S_T)}")
    a(f"s_addc_u32 {sr(SRD_X+1)}, {sr(S_PTR+1)}, 0")
    a(f"s_mov_b32 {sr(SRD_X+2)}, 86016")
    a(f"s_mov_b32 {sr(SRD_X+3)}, 0x00020000")
    a(f"s_lshl_b32 {sr(S_T)}, {sr(S_B)}, 3")
    a(f"s_add_u32 {sr(S_T)}, {sr(S_T)}, {sr(S_HKV)}")
    a(f"s_lshl_b32 {sr(S_T)}, {sr(S_T)}, 19")
    a(f"s_add_u32 {sr(SRD_K)}, {sr(S_PTR+2)}, {sr(S_T)}")
    a(f"s_addc_u32 {sr(SRD_K+1)}, {sr(S_PTR+3)}, 0")
    a(f"s_mov_b32 {sr(SRD_K+2)}, 524288")
    a(f"s_mov_b32 {sr(SRD_K+3)}, 0x00020000")
    a(f"s_add_u32 {sr(SRD_V)}, {sr(S_PTR+4)}, {sr(S_T)}")
    a(f"s_addc_u32 {sr(SRD_V+1)}, {sr(S_PTR+5)}, 0")
    a(f"s_mov_b32 {sr(SRD_V+2)}, 524288")
    a(f"s_mov_b32 {sr(SRD_V+3)}, 0x00020000")
    a(f"s_lshl_b32 {sr(S_T)}, {sr(S_HQ)}, 9")
    a(f"s_add_u32 {sr(SRD_W)}, {sr(S_PTR+6)}, {sr(S_T)}")
    a(f"s_addc_u32 {sr(SRD_W+1)}, {sr(S_PTR+7)}, 0")
    a(f"s_sub_u32 {sr(SRD_W+2)}, {448*8192}, {sr(S_T)}")
    a(f"s_mov_b32 {sr(SRD_W+3)}, 0x00020000")
    a(f"s_lshl_b32 {sr(S_T)}, {sr(S_BLK)}, 3")
    a(f"s_add_u32 {sr(S_T)}, {sr(S_T)}, {sr(S_B)}")
    a(f"s_mul_i32 {sr(S_T)}, {sr(S_T)}, 3")
    a(f"s_add_u32 {sr(S_T)}, {sr(S_T)}, {sr(S_WAVE)}")
    a(f"s_lshl_b32 {sr(S_T)}, {sr(S_T)}, 18")
    a(f"s_lshl_b32 {sr(S_T+1)}, {sr(S_HQ)}, 14")
    a(f"s_add_u32 {sr(S_T)}, {sr(S_T)}, {sr(S_T+1)}")
    a(f"s_add_u32 {sr(SRD_O)}, {sr(S_WS)}, {sr(S_T)}")
    a(f"s_addc_u32 {sr(SRD_O+1)}, {sr(S_WS+1)}, 0")
    a(f"s_mov_b32 {sr(SRD_O+2)}, 16384")
    a(f"s_mov_b32 {sr(SRD_O+3)}, 0x00020000")
    a("v_xor_b32 v4, v3, v2")
    a("v_lshlrev_b32 v4, 4, v4")
    a("v_lshl_add_u32 v4, v2, 9, v4")
    a(f"s_and_b32 {sr(S_T)}, {sr(S_WAVE)}, 1")
    a(f"s_lshl_b32 {sr(S_T)}, {sr(S_T)}, 7")
    a(f"v_xor_b32 v4, {sr(S_T)}, v4")
    a(f"s_lshl_b32 {sr(S_T)}, {sr(S_WAVE)}, 12")
    a(f"v_add_u32 v4, {sr(S_T)}, v4")
    for q in range(4):
        a(f"v_xor_b32 {vr(V_KD+q)}, {32*q}, v4")
    a("v_lshlrev_b32 v5, 2, v2")
    a("v_xor_b32 v5, v3, v5")
    a("v_lshlrev_b32 v5, 4, v5")
    a("v_lshl_add_u32 v6, v2, 9, v5")
    a(f"v_add_u32 {vr(V_VD)}, {sr(S_T)}, v6")
    a(f"v_xor_b32 {vr(V_VD+1)}, 128, {vr(V_VD)}")
    a("v_lshl_add_u32 v6, v2, 13, v5")
    a(f"s_lshl_b32 {sr(S_T)}, {sr(S_WAVE)}, 16")
    a(f"v_add_u32 {vr(V_WD)}, {sr(S_T)}, v6")
    a(f"v_xor_b32 {vr(V_WD+1)}, 128, {vr(V_WD)}")
    a("v_and_b32 v6, 15, v3")
    a("v_xor_b32 v6, v6, v2")
    a("v_lshlrev_b32 v6, 4, v6")
    a("v_lshl_add_u32 v6, v3, 9, v6")
    for sx in range(8):
        a(f"v_xor_b32 {vr(V_KA+sx)}, {32*sx}, v6")
    a(f"v_bfe_u32 v6, {vr(V_L)}, 2, 2")
    a("v_lshl_add_u32 v7, v2, 2, v6")
    a("v_lshlrev_b32 v7, 9, v7")
    a(f"v_bfe_u32 v8, {vr(V_L)}, 4, 1")
    a("v_lshl_add_u32 v7, v8, 5, v7")
    a(f"v_and_b32 v8, 3, {vr(V_L)}")
    a("v_lshl_add_u32 v7, v8, 3, v7")
    a(f"v_add_u32 v7, {VREG}, v7")
    for tt in range(4):
        a(f"v_xor_b32 v8, {tt}, v6")
        a(f"v_lshl_add_u32 {vr(V_VA+tt)}, v8, 6, v7")
        a(f"v_subrev_u32 {vr(V_VA2+tt)}, {VREG}, {vr(V_VA+tt)}")
    a(f"s_lshl_b32 {sr(S_T)}, {sr(S_WAVE)}, 5")
    a(f"v_add_u32 v6, {sr(S_T)}, v3")
    a("v_mul_u32_u24 v6, 896, v6")
    a(f"v_lshl_add_u32 {vr(V_X)}, v2, 3, v6")
    a(f"v_lshlrev_b32 {vr(V_OST)}, 4, {vr(V_L)}")
    a(f"s_mov_b32 {sr(S_KOFF)}, 0")
    a(f"s_lshl_b32 {sr(S_T)}, {sr(S_WAVE)}, 12")
    a(f"s_cmp_eq_u32 {sr(S_WAVE)}, 3")
    a("s_cbranch_scc1 L_loader")

    for T in range(NWQ):
        for j in range(2):
            for u in range(2):
                off = (32 * T + 16 * j + 8 * u) * 2
                a(f"buffer_load_dwordx2 {ar(A_X + (T*2+j)*4 + 2*u, 2)}, {vr(V_X)}, {sr(SRD_X,4)}, 0 offen offset:{off}")
    for i in range(128):
        a(f"v_mov_b32 {vr(V_O+i)}, 0")
    for T in range(7):
        emit_dma(a, T, 0)
    for T in range(NWQ):
        a(f"s_waitcnt vmcnt({4*min(6, 13-T)}) lgkmcnt(0)")
        a("s_barrier")
        if T + 7 < NWQ:
            emit_dma(a, T + 7, 0)
        emit_pv(a, T % 4, lambda j, T=T: ar(A_X + (T*2+j)*4, 4), V_VA if (T % 8) < 4 else V_VA2)
    a("s_barrier")
    for T in range(3):
        emit_dma(a, NWQ + T, (NWQ + T) % NS)
    a("s_nop 7")
    a("s_nop 7")
    for t in range(8):
        for jj in range(2):
            base = V_O + 16 * t + 8 * jj
            for q in range(4):
                a(f"v_cvt_pk_bf16_f32 {vr(V_T0+q)}, {vr(base+2*q)}, {vr(base+2*q+1)}")
            a("s_nop 1")
            a(f"v_permlane32_swap_b32 {vr(V_T0)}, {vr(V_T2)}")
            a(f"v_permlane32_swap_b32 {vr(V_T1)}, {vr(V_T3)}")
            a("s_nop 1")
            for q in range(4):
                a(f"v_accvgpr_write_b32 {ar(A_Q + (2*t+jj)*4 + q)}, {vr(V_T0+q)}")
    for i in range(128):
        a(f"v_mov_b32 {vr(V_O+i)}, 0")
    a(f"v_mov_b32 {vr(V_M)}, 0xff7fffff")
    a(f"v_mov_b32 {vr(V_LS)}, 0")
    a(f"s_mov_b32 {sr(S_CNT)}, 0")
    a("s_waitcnt vmcnt(16) lgkmcnt(0)")
    a("s_barrier")
    emit_qk(a, NWQ % NS, 0)
    a.label("L_attn_loop")
    for ts in range(4):
        T = NWQ + ts
        slot = (NWQ + ts) % NS
        a("s_waitcnt vmcnt(8) lgkmcnt(0)")
        a("s_barrier")
        emit_dma(a, T + 3, (slot + 3) % NS)
        if not os.environ.get("NOCOMP"):
            emit_qk(a, (slot + 1) % NS, (ts + 1) & 1, softmax_segments(a, ts & 1, ts))
            a("s_nop 1")
            emit_pv(a, slot, lambda j: vr(V_P + 4*j, 4))
    a(f"s_add_u32 {sr(S_CNT)}, {sr(S_CNT)}, 1")
    a(f"s_cmp_lt_u32 {sr(S_CNT)}, {LOOPN}")
    a("s_cbranch_scc1 L_attn_loop")
    a("s_nop 7")
    a("s_nop 7")
    a(f"v_mov_b32 {vr(V_T0)}, {vr(V_LS)}")
    a(f"v_mov_b32 {vr(V_T1)}, {vr(V_LS)}")
    a("s_nop 1")
    a(f"v_permlane32_swap_b32 {vr(V_T0)}, {vr(V_T1)}")
    a("s_nop 1")
    a(f"v_add_f32 {vr(V_T0)}, {vr(V_T0)}, {vr(V_T1)}")
    a(f"v_rcp_f32 {vr(V_T0)}, {vr(V_T0)}")
    a("s_nop 0")
    for t in range(8):
        for jj in range(2):
            base = V_O + 16 * t + 8 * jj
            for q in range(8):
                a(f"v_mul_f32 {vr(base+q)}, {vr(V_T0)}, {vr(base+q)}")
            for q in range(4):
                a(f"v_cvt_pk_bf16_f32 {vr(V_KF + 4*((2*t+jj) % 4) + q)}, {vr(base+2*q)}, {vr(base+2*q+1)}")
            a(f"s_mov_b32 {sr(S_T+1)}, {(2*t+jj)*1024}")
            a(f"buffer_store_dwordx4 {vr(V_KF + 4*((2*t+jj) % 4), 4)}, {vr(V_OST)}, {sr(SRD_O,4)}, {sr(S_T+1)} offen")
    a("s_waitcnt vmcnt(0)")
    a("s_branch L_attn_end")

    a.label("L_loader")
    for T in range(7):
        emit_dma(a, T, 0)
    for T in range(NWQ):
        a(f"s_waitcnt vmcnt({4*min(6, 13-T)}) lgkmcnt(0)")
        a("s_barrier")
        if T + 7 < NWQ:
            emit_dma(a, T + 7, 0)
    a("s_barrier")
    for T in range(3):
        emit_dma(a, NWQ + T, (NWQ + T) % NS)
    a(f"s_mov_b32 {sr(S_CNT)}, 0")
    a("s_waitcnt vmcnt(16) lgkmcnt(0)")
    a("s_barrier")
    a.label("L_loader_loop")
    for ts in range(4):
        T = NWQ + ts
        slot = (NWQ + ts) % NS
        a("s_waitcnt vmcnt(8) lgkmcnt(0)")
        a("s_barrier")
        emit_dma(a, T + 3, (slot + 3) % NS)
    a(f"s_add_u32 {sr(S_CNT)}, {sr(S_CNT)}, 1")
    a(f"s_cmp_lt_u32 {sr(S_CNT)}, {LOOPN}")
    a("s_cbranch_scc1 L_loader_loop")
    a("s_waitcnt vmcnt(0)")
    a.label("L_attn_end")
    a("s_endpgm")


NST = 32
LDS2 = 32768 + 64
O2_ACC = 64
O2_OF = 96
O2_WF = 32
O2_WA = 20
O2_D = 12
O2_OV = 13
O2_T = 2
PART_OFF = 16 << 20


def emit_dma2(a, slot):
    a(f"s_add_u32 {sr(S_M0)}, {sr(S_T)}, {slot*8192}")
    a(f"s_mov_b32 m0, {sr(S_M0)}")
    for q in range(2):
        a(f"s_add_u32 {sr(S_T+1)}, {sr(S_KOFF)}, {q*(7168-1024)}")
        a(f"buffer_load_dwordx4 {vr(O2_D)}, {sr(SRD_W,4)}, {sr(S_T+1)} offen offset:{q*1024} lds")
    a(f"s_add_u32 {sr(S_KOFF)}, {sr(S_KOFF)}, {64*896}")


def emit_oload(a, buf):
    for j in range(4):
        a(f"buffer_load_dwordx4 {vr(O2_OF + 16*buf + 4*j, 4)}, {vr(O2_OV)}, {sr(SRD_O,4)}, {sr(S_T+2)} offen offset:{j*1024}")
    a(f"s_add_u32 {sr(S_T+2)}, {sr(S_T+2)}, 4096")


def emit_stage2(a, slot):
    seq = [(j, nt) for j in range(4) for nt in range(2)]
    def rd(i):
        j, nt = seq[i]
        for u in range(2):
            imm = slot * 8192 + (16 * j + 8 * u) * 128
            a(f"ds_read_b64_tr_b16 {vr(O2_WF + 4*(i%4) + 2*u, 2)}, {vr(O2_WA+nt)} offset:{imm}")
    for i in range(3):
        rd(i)
    for i, (j, nt) in enumerate(seq):
        if i + 3 < 8:
            rd(i + 3)
            a("s_waitcnt lgkmcnt(6)")
        else:
            a(f"s_waitcnt lgkmcnt({2*(7-i)})")
        a(f"v_mfma_f32_32x32x16_bf16 {vr(O2_ACC+16*nt,16)}, {vr(O2_WF+4*(i%4),4)}, {vr(O2_OF+16*slot+4*j,4)}, {vr(O2_ACC+16*nt,16)}")


def gen_oproj(a):
    a.label("oproj_kernel")
    a("s_cmp_ge_u32 s2, 224")
    a("s_cbranch_scc1 L_op_end")
    a("v_lshrrev_b32 v2, 6, v0")
    a(f"v_and_b32 {vr(V_L)}, 63, v0")
    a("s_nop 0")
    a(f"v_readfirstlane_b32 {sr(S_WAVE)}, v2")
    a(f"s_and_b32 {sr(S_B)}, s2, 7")
    a(f"s_lshr_b32 {sr(S_BLK)}, s2, 3")
    a(f"s_and_b32 {sr(S_BLK)}, {sr(S_BLK)}, 1")
    a(f"s_lshr_b32 {sr(S_HKV)}, s2, 4")
    a(f"s_and_b32 {sr(S_HKV)}, {sr(S_HKV)}, 1")
    a(f"s_lshr_b32 {sr(S_HQ)}, s2, 5")
    a(f"s_mul_i32 {sr(S_T)}, {sr(S_BLK)}, 40")
    a(f"s_add_u32 s28, s0, {sr(S_T)}")
    a("s_addc_u32 s29, s1, 0")
    a(f"s_load_dwordx2 {sr(S_PTR,2)}, s[28:29], 32")
    a(f"s_load_dwordx4 {sr(S_PTR+4,4)}, s[0:1], 80")
    a(f"s_load_dwordx2 {sr(S_PTR+2,2)}, s[0:1], 96")
    a(f"v_lshrrev_b32 v2, 5, {vr(V_L)}")
    a(f"v_and_b32 v3, 31, {vr(V_L)}")
    a("s_waitcnt lgkmcnt(0)")
    a(f"s_mul_i32 {sr(S_T)}, {sr(S_HKV)}, {2048*896}")
    a(f"s_add_u32 {sr(SRD_W)}, {sr(S_PTR)}, {sr(S_T)}")
    a(f"s_addc_u32 {sr(SRD_W+1)}, {sr(S_PTR+1)}, 0")
    a(f"s_sub_u32 {sr(SRD_W+2)}, {4096*896}, {sr(S_T)}")
    a(f"s_mov_b32 {sr(SRD_W+3)}, 0x00020000")
    a(f"s_lshl_b32 {sr(S_T)}, {sr(S_BLK)}, 3")
    a(f"s_add_u32 {sr(S_T+3)}, {sr(S_T)}, {sr(S_B)}")
    a(f"s_mul_i32 {sr(S_T)}, {sr(S_T+3)}, 3")
    a(f"s_add_u32 {sr(S_T)}, {sr(S_T)}, {sr(S_WAVE)}")
    a(f"s_lshl_b32 {sr(S_T)}, {sr(S_T)}, 18")
    a(f"s_lshl_b32 {sr(S_T+1)}, {sr(S_HKV)}, 17")
    a(f"s_add_u32 {sr(S_T)}, {sr(S_T)}, {sr(S_T+1)}")
    a(f"s_add_u32 {sr(SRD_O)}, {sr(S_PTR+2)}, {sr(S_T)}")
    a(f"s_addc_u32 {sr(SRD_O+1)}, {sr(S_PTR+3)}, 0")
    a(f"s_mov_b32 {sr(SRD_O+2)}, 0x2000000")
    a(f"s_mov_b32 {sr(SRD_O+3)}, 0x00020000")
    a(f"s_mul_i32 {sr(S_T+3)}, {sr(S_T+3)}, 7")
    a(f"s_add_u32 {sr(S_T+3)}, {sr(S_T+3)}, {sr(S_HQ)}")
    a(f"s_mul_i32 {sr(S_T)}, {sr(S_T+3)}, 49152")
    a(f"s_add_u32 {sr(S_T)}, {sr(S_T)}, {PART_OFF}")
    a(f"s_add_u32 {sr(SRD_X)}, {sr(S_PTR+2)}, {sr(S_T)}")
    a(f"s_addc_u32 {sr(SRD_X+1)}, {sr(S_PTR+3)}, 0")
    a(f"s_mov_b32 {sr(SRD_X+2)}, 49152")
    a(f"s_mov_b32 {sr(SRD_X+3)}, 0x00020000")
    a(f"s_mov_b32 {sr(SRD_K)}, {sr(S_PTR+4)}")
    a(f"s_mov_b32 {sr(SRD_K+1)}, {sr(S_PTR+5)}")
    a(f"s_mov_b32 {sr(SRD_K+2)}, {8*96*896*2}")
    a(f"s_mov_b32 {sr(SRD_K+3)}, 0x00020000")
    a(f"s_mov_b32 {sr(SRD_V)}, {sr(S_PTR+6)}")
    a(f"s_mov_b32 {sr(SRD_V+1)}, {sr(S_PTR+7)}")
    a(f"s_mov_b32 {sr(SRD_V+2)}, 256")
    a(f"s_mov_b32 {sr(SRD_V+3)}, 0x00020000")
    a(f"v_lshrrev_b32 v4, 3, {vr(V_L)}")
    a("v_mul_u32_u24 v4, 896, v4")
    a(f"v_and_b32 v5, 7, {vr(V_L)}")
    a(f"v_bfe_u32 v6, {vr(V_L)}, 4, 1")
    a("v_lshlrev_b32 v6, 2, v6")
    a("v_xor_b32 v5, v5, v6")
    a("v_lshl_add_u32 v4, v5, 4, v4")
    a(f"s_lshl_b32 {sr(S_T)}, {sr(S_HQ)}, 7")
    a(f"s_mul_i32 {sr(S_T+1)}, {sr(S_WAVE)}, {2*7168}")
    a(f"s_add_u32 {sr(S_T)}, {sr(S_T)}, {sr(S_T+1)}")
    a(f"v_add_u32 {vr(O2_D)}, {sr(S_T)}, v4")
    a(f"v_bfe_u32 v6, {vr(V_L)}, 2, 2")
    a("v_lshl_add_u32 v7, v2, 2, v6")
    a("v_lshlrev_b32 v7, 7, v7")
    a(f"v_bfe_u32 v8, {vr(V_L)}, 4, 1")
    a("v_lshl_add_u32 v7, v8, 5, v7")
    a(f"v_and_b32 v8, 3, {vr(V_L)}")
    a("v_lshl_add_u32 v7, v8, 3, v7")
    a("v_lshrrev_b32 v8, 1, v6")
    for nt in range(2):
        a(f"v_xor_b32 v9, {nt}, v8")
        a(f"v_lshl_add_u32 {vr(O2_WA+nt)}, v9, 6, v7")
    a(f"v_lshlrev_b32 {vr(O2_OV)}, 4, {vr(V_L)}")
    a(f"s_mov_b32 {sr(S_KOFF)}, 0")
    a(f"s_mov_b32 {sr(S_T+2)}, 0")
    a(f"s_lshl_b32 {sr(S_T)}, {sr(S_WAVE)}, 11")
    a(f"s_cmp_eq_u32 {sr(S_WAVE)}, 3")
    a("s_cbranch_scc1 L_op_loader")
    for i in range(32):
        a(f"v_mov_b32 {vr(O2_ACC+i)}, 0")
    emit_oload(a, 0)
    emit_dma2(a, 0)
    emit_oload(a, 1)
    emit_dma2(a, 1)
    emit_dma2(a, 2)
    a(f"s_mov_b32 {sr(S_CNT)}, 0")
    a.label("L_op_loop")
    for st in range(4):
        a("s_waitcnt vmcnt(8) lgkmcnt(0)")
        a("s_barrier")
        emit_oload(a, (st + 2) % 4)
        emit_dma2(a, (st + 3) % 4)
        emit_stage2(a, st)
    a(f"s_add_u32 {sr(S_CNT)}, {sr(S_CNT)}, 1")
    a(f"s_cmp_lt_u32 {sr(S_CNT)}, {NST//4}")
    a("s_cbranch_scc1 L_op_loop")
    a("s_nop 7")
    a("s_nop 7")
    a(f"s_lshl_b32 {sr(S_T+1)}, {sr(S_HKV)}, 0")
    a(f"s_mul_i32 {sr(S_T+1)}, {sr(S_T+1)}, 24576")
    a(f"s_lshl_b32 {sr(S_T+2)}, {sr(S_WAVE)}, 13")
    a(f"s_add_u32 {sr(S_T+1)}, {sr(S_T+1)}, {sr(S_T+2)}")
    for i in range(8):
        a(f"buffer_store_dwordx4 {vr(O2_ACC+4*i,4)}, {vr(O2_OV)}, {sr(SRD_X,4)}, {sr(S_T+1)} offen offset:{(i%4)*1024} sc0 sc1" if i < 4 else
          f"buffer_store_dwordx4 {vr(O2_ACC+4*i,4)}, {vr(O2_OV)}, {sr(SRD_X,4)}, {sr(S_T+3)} offen offset:{(i%4)*1024} sc0 sc1")
        if i == 3:
            a(f"s_add_u32 {sr(S_T+3)}, {sr(S_T+1)}, 4096")
    a("s_branch L_op_join")
    a.label("L_op_loader")
    for st in range(3):
        emit_dma2(a, st)
    a(f"s_mov_b32 {sr(S_CNT)}, 0")
    a.label("L_op_lloop")
    for st in range(4):
        a("s_waitcnt vmcnt(4) lgkmcnt(0)")
        a("s_barrier")
        emit_dma2(a, (st + 3) % 4)
    a(f"s_add_u32 {sr(S_CNT)}, {sr(S_CNT)}, 1")
    a(f"s_cmp_lt_u32 {sr(S_CNT)}, {NST//4}")
    a("s_cbranch_scc1 L_op_lloop")
    a.label("L_op_join")
    a("s_waitcnt vmcnt(0)")
    a("s_barrier")
    a(f"s_lshl_b32 {sr(S_T+4)}, {sr(S_BLK)}, 3")
    a(f"s_add_u32 {sr(S_T+4)}, {sr(S_T+4)}, {sr(S_B)}")
    a(f"s_mul_i32 {sr(S_T+4)}, {sr(S_T+4)}, 7")
    a(f"s_add_u32 {sr(S_T+4)}, {sr(S_T+4)}, {sr(S_HQ)}")
    a(f"s_cmp_lg_u32 {sr(S_WAVE)}, 0")
    a("s_cbranch_scc1 L_op_wait")
    a(f"s_and_b32 {sr(S_T+5)}, {sr(S_T+4)}, 3")
    a(f"s_lshl_b32 {sr(S_T+5)}, {sr(S_T+5)}, 3")
    a(f"s_lshl_b32 {sr(S_T+6)}, 1, {sr(S_T+5)}")
    a(f"s_and_b32 {sr(S_T+7)}, {sr(S_T+4)}, 0xfc")
    a(f"v_mov_b32 v4, {sr(S_T+6)}")
    a(f"v_mov_b32 v5, {sr(S_T+7)}")
    a("v_cmp_eq_u32 vcc, 0, v1")
    a("s_and_saveexec_b64 s[60:61], vcc")
    a(f"buffer_atomic_add v4, v5, {sr(SRD_V,4)}, 0 offen sc0")
    a("s_waitcnt vmcnt(0)")
    a(f"v_lshrrev_b32 v4, {sr(S_T+5)}, v4")
    a("v_and_b32 v4, 0xff, v4")
    a("v_mov_b32 v5, 32768")
    a("ds_write_b32 v5, v4")
    a("s_mov_b64 exec, s[60:61]")
    a.label("L_op_wait")
    a("s_waitcnt lgkmcnt(0)")
    a("s_barrier")
    a("v_mov_b32 v5, 32768")
    a("ds_read_b32 v4, v5")
    a("s_waitcnt lgkmcnt(0)")
    a(f"v_readfirstlane_b32 {sr(S_T+5)}, v4")
    a("s_nop 3")
    a(f"s_cmp_eq_u32 {sr(S_T+5)}, 0")
    a("s_cbranch_scc1 L_op_end")
    a(f"s_cmp_eq_u32 {sr(S_WAVE)}, 3")
    a("s_cbranch_scc1 L_op_end")
    a(f"s_xor_b32 {sr(S_T+1)}, {sr(S_HKV)}, 1")
    a(f"s_mul_i32 {sr(S_T+1)}, {sr(S_T+1)}, 24576")
    a(f"s_lshl_b32 {sr(S_T+2)}, {sr(S_WAVE)}, 13")
    a(f"s_add_u32 {sr(S_T+1)}, {sr(S_T+1)}, {sr(S_T+2)}")
    a(f"s_add_u32 {sr(S_T+3)}, {sr(S_T+1)}, 4096")
    for i in range(8):
        so = S_T + 1 if i < 4 else S_T + 3
        a(f"buffer_load_dwordx4 {vr(O2_OF+4*i,4)}, {vr(O2_OV)}, {sr(SRD_X,4)}, {sr(so)} offen offset:{(i%4)*1024} sc0 sc1")
    a("s_waitcnt vmcnt(0)")
    for i in range(32):
        a(f"v_add_f32 {vr(O2_ACC+i)}, {vr(O2_ACC+i)}, {vr(O2_OF+i)}")
    a(f"s_mul_i32 {sr(S_T+1)}, {sr(S_B)}, 96")
    a(f"s_lshl_b32 {sr(S_T+2)}, {sr(S_WAVE)}, 5")
    a(f"s_add_u32 {sr(S_T+1)}, {sr(S_T+1)}, {sr(S_T+2)}")
    a(f"v_add_u32 v4, {sr(S_T+1)}, v3")
    a("v_mul_u32_u24 v4, 1792, v4")
    a(f"s_mul_i32 {sr(S_T+1)}, {sr(S_BLK)}, 896")
    a(f"s_lshl_b32 {sr(S_T+2)}, {sr(S_HQ)}, 7")
    a(f"s_add_u32 {sr(S_T+1)}, {sr(S_T+1)}, {sr(S_T+2)}")
    a(f"v_add_u32 v4, {sr(S_T+1)}, v4")
    a("v_lshl_add_u32 v4, v2, 3, v4")
    for nt in range(2):
        for g in range(4):
            b0 = O2_ACC + 16 * nt + 4 * g
            a(f"v_cvt_pk_bf16_f32 v6, {vr(b0)}, {vr(b0+1)}")
            a(f"v_cvt_pk_bf16_f32 v7, {vr(b0+2)}, {vr(b0+3)}")
            a(f"buffer_store_dwordx2 v[6:7], v4, {sr(SRD_K,4)}, 0 offen offset:{(32*nt+8*g)*2}")
            a("s_nop 1")
    a.label("L_op_end")
    a("s_endpgm")


HEADER = """; @launch kernel={n}_kernel grid=(256,1,1) block=(256,1,1) lds={lds1}
; @launch kernel=oproj_kernel grid=(224,1,1) block=(256,1,1) lds={lds2}
.amdgcn_target "amdgcn-amd-amdhsa--gfx950"
.text
"""


def kd(name, nvgpr, accum):
    return f""".amdhsa_kernel {name}
  .amdhsa_next_free_vgpr {nvgpr}
  .amdhsa_next_free_sgpr 102
  .amdhsa_accum_offset {accum}
  .amdhsa_group_segment_fixed_size 0
  .amdhsa_kernarg_size 104
  .amdhsa_user_sgpr_count 2
  .amdhsa_user_sgpr_kernarg_segment_ptr 1
  .amdhsa_system_sgpr_workgroup_id_x 1
.end_amdhsa_kernel
"""


def main():
    a = Asm()
    out = HEADER.format(n=NAME, lds1=LDS1, lds2=LDS2)
    out += f".globl {NAME}_kernel\n.p2align 8\n.type {NAME}_kernel,@function\n"
    gen_attn(a)
    out += a.text()
    a = Asm()
    out += ".globl oproj_kernel\n.p2align 8\n.type oproj_kernel,@function\n"
    gen_oproj(a)
    out += a.text()
    out += '.section .rodata,"a"\n.p2align 6\n'
    out += kd(f"{NAME}_kernel", 256 + 176, 256)
    out += ".p2align 6\n" + kd("oproj_kernel", 192, 192)
    sys.stdout.write(out)


if __name__ == "__main__":
    main()
```
